```python
import torch

def _softmax(x, axis=-1):
    return torch.softmax(x, dim=axis)
def _gelu(x):
    return torch.nn.functional.gelu(x, approximate="tanh")
def _silu(x):
    return torch.nn.functional.silu(x)
def _sigmoid(x):
    return torch.sigmoid(x)
def _layernorm(x, axis=-1, eps=1e-5):
    m = x.mean(dim=axis, keepdim=True)
    v = x.var(dim=axis, keepdim=True, unbiased=False)
    return (x - m) / torch.sqrt(v + eps)
def _scatter_add(tgt, idx, src, axis=0):
    return tgt.clone().index_add_(axis, idx, src)
def _segment_sum(src, seg, n):
    out = torch.zeros((n,) + src.shape[1:], dtype=src.dtype)
    return out.index_add_(0, seg, src)
def _pad(x, pw):
    flat = tuple(v for pair in reversed(pw) for v in pair)
    return torch.nn.functional.pad(x, flat)

kernel_name = 'sequential_preLN__spectral_gfnet__moe_arch_mod__prompt'

def setup_inputs():

    _w = (lambda a: (lambda t: t.to(torch.bfloat16) if t.is_floating_point() else t)(torch.as_tensor(a)))
    def _A_setup():
        B, S, D = 1, 2048, 1024
        Df = D // 2 + 1
        return {
            "x": _w((lambda *s: torch.randn(*s, dtype=torch.bfloat16) * 0.05)(B, S, D)),
            "w_r": _w((lambda *s: torch.randn(*s, dtype=torch.bfloat16) * 1.6)(S, Df) * 0.02),
            "w_i": _w((lambda *s: torch.randn(*s, dtype=torch.bfloat16) * 1.6)(S, Df) * 0.02),
        }
    _A_in = _A_setup()

    def _B_setup():
        B, S, D, F, C = 1, 2048, 1024, 3584, 8
        return {
            "x": _w((lambda *s: torch.randn(*s, dtype=torch.bfloat16) * 0.05)(B, S, D)),
            "w_r": _w((lambda *s: torch.randn(*s, dtype=torch.bfloat16) * 0.2)(D)),
            "w_gate": _w((lambda *s: torch.randn(*s, dtype=torch.bfloat16) * 0.2)(D, F)),
            "w_up": _w((lambda *s: torch.randn(*s, dtype=torch.bfloat16) * 0.2)(D, F)),
            "w_down": _w((lambda *s: torch.randn(*s, dtype=torch.bfloat16) * 0.2)(F, D)),
        }
    _B_in = _B_setup()

    return {
        "A_x": _A_in["x"],
        "A_w_r": _A_in["w_r"],
        "A_w_i": _A_in["w_i"],
        "B_x": _B_in["x"],
        "B_w_r": _B_in["w_r"],
        "B_w_gate": _B_in["w_gate"],
        "B_w_up": _B_in["w_up"],
        "B_w_down": _B_in["w_down"],
    }

def reference(A_x, A_w_r, A_w_i, B_x, B_w_r, B_w_gate, B_w_up, B_w_down):
    def _A_ref(x, w_r, w_i):
        B, S, D = x.shape
        X = (lambda x, axes=(-2,-1): torch.fft.rfft2(x.float(), dim=axes))(x, axes=(-2, -1))
        W = w_r + 1j * w_i
        X = X * W
        y = (lambda x, s, axes=(-2,-1): torch.fft.irfft2(x, s=s, dim=axes).to(torch.bfloat16))(X, (S, D), axes=(-2, -1))
        return y

    def _B_ref(x, w_r, w_gate, w_up, w_down):
        B, S, D = x.shape
        C = 8
        r = x @ w_r
        idx = torch.argsort(-r, axis=-1)[:, :C]
        idx_e = (lambda x, n, axis: torch.repeat_interleave(x, n, dim=axis))(idx.reshape(B, C, 1), D, axis=2)
        x_sel = (lambda x, i, axis: torch.take_along_dim(x, i, dim=axis))(x, idx_e, axis=1)
        g = _silu(x_sel @ w_gate)
        u = x_sel @ w_up
        y = (g * u) @ w_down
        r_sel = _sigmoid((lambda x, i, axis: torch.take_along_dim(x, i, dim=axis))(r, idx, axis=1))
        y = y * r_sel.reshape(B, C, 1)
        b_off = (torch.arange(B) * S).reshape(B, 1)
        flat_idx = (idx + b_off).reshape(B * C)
        zero = (x * 0.0).reshape(B * S, D)
        upd = _scatter_add(zero, flat_idx, y.reshape(B * C, D), axis=0)
        return x + upd.reshape(B, S, D)

    x = A_x
    h = x + _A_ref(_layernorm(x, axis=-1), A_w_r, A_w_i)
    h2 = h + _B_ref(_layernorm(h, axis=-1), B_w_r, B_w_gate, B_w_up, B_w_down)
    return h2
```

```python
import re

TRANS = ('v_exp_f32', 'v_log_f32', 'v_rcp_f32', 'v_rsq_f32', 'v_sqrt_f32', 'v_sin_f32', 'v_cos_f32')


def regs_of(tok):
    tok = tok.strip()
    tok = tok.lstrip('-')
    m = re.fullmatch(r'\|?(?:abs\()?([vsa])(\d+)\)?\|?', tok)
    if m:
        return [(m.group(1), int(m.group(2)))]
    m = re.fullmatch(r'([vsa])\[(\d+):(\d+)\]', tok)
    if m:
        return [(m.group(1), i) for i in range(int(m.group(2)), int(m.group(3)) + 1)]
    if tok in ('vcc', 'vcc_lo', 'vcc_hi'):
        return [('x', 'vcc')]
    if tok in ('exec', 'exec_lo', 'exec_hi'):
        return [('x', 'exec')]
    if tok == 'm0':
        return [('x', 'm0')]
    return []


class Ins:
    def __init__(self, text):
        self.text = text
        t = text.split(';')[0].strip()
        parts = t.split(None, 1)
        self.op = parts[0]
        rest = parts[1] if len(parts) > 1 else ''
        ops = []
        depth = 0
        cur = ''
        for ch in rest:
            if ch in '[(':
                depth += 1
            if ch in '])':
                depth -= 1
            if ch == ',' and depth == 0:
                ops.append(cur.strip())
                cur = ''
            else:
                cur += ch
        if cur.strip():
            ops.append(cur.strip())
        mods = ''
        if ops:
            last = ops[-1].split(None, 1)
            ops[-1] = last[0]
            mods = last[1] if len(last) > 1 else ''
        self.ops = ops
        self.mods = mods
        op = self.op
        self.kind = 'other'
        self.dst = []
        self.src = []
        self.srcC = []
        self.srcAB = []
        self.passes = 0
        self.dpp = False
        self.states = 1
        R = [regs_of(o) for o in ops]
        flat = lambda l: [x for y in l for x in y]
        if op == 's_nop':
            self.kind = 'nop'
            self.states = int(ops[0], 0) + 1
        elif op.startswith('v_mfma'):
            self.kind = 'mfma'
            self.dst = R[0]
            self.srcAB = R[1] + R[2]
            self.srcC = R[3]
            self.src = self.srcAB + self.srcC
            if '32x32x16' in op or '32x32x8' in op:
                self.passes = 8
            elif '16x16x32' in op or '16x16x16' in op:
                self.passes = 4
            else:
                raise ValueError('unknown mfma ' + op)
        elif op.startswith('v_'):
            self.kind = 'valu'
            self.dpp = op.endswith('_dpp') or 'quad_perm' in mods or 'row_' in mods
            if op.startswith('v_swap') or op.startswith('v_permlane'):
                self.dst = R[0] + R[1]
                self.src = R[0] + R[1]
            elif op.startswith('v_cmp'):
                self.dst = R[0]
                self.src = flat(R[1:])
            elif '_co_' in op:
                self.dst = R[0] + R[1]
                self.src = flat(R[2:])
            else:
                self.dst = R[0]
                self.src = flat(R[1:])
                if op.startswith(('v_fmac', 'v_dot2c', 'v_pk_fmac', 'v_writelane')) or self.dpp:
                    self.src = self.src + R[0]
        elif op.startswith(('buffer_', 'global_', 'flat_')):
            self.kind = 'vmem'
            isl = ('lds' in mods.split()) or '_lds_' in op
            self.lds_dma = isl
            if op in ('buffer_wbl2', 'buffer_inv'):
                pass
            elif 'store' in op or 'atomic' in op:
                self.src = flat(R)
                if 'atomic' in op and 'sc0' in mods.split() and op.startswith('global'):
                    self.dst = R[0]
                    self.src = flat(R[1:])
                if op.startswith('buffer_store'):
                    self.sdata = R[0]
                elif op.startswith('global_store'):
                    self.sdata = R[1]
                else:
                    self.sdata = []
            elif isl:
                self.src = flat(R) + [('x', 'm0')]
            else:
                self.dst = R[0]
                self.src = flat(R[1:])
        elif op.startswith('ds_'):
            self.kind = 'ds'
            if op.startswith(('ds_read', 'ds_bpermute', 'ds_permute', 'ds_swizzle')) or '_rtn' in op:
                self.dst = R[0]
                self.src = flat(R[1:])
            else:
                self.src = flat(R)
        elif op.startswith('s_'):
            self.kind = 'salu'
            if op.startswith(('s_cmp', 's_cbranch', 's_branch', 's_waitcnt', 's_barrier', 's_endpgm', 's_setprio', 's_sleep', 's_bitcmp')):
                self.src = flat(R)
            else:
                self.dst = R[0] if R else []
                self.src = flat(R[1:])
        self.istrans = any(op.startswith(t) for t in TRANS)
        self.isdot = op.startswith('v_dot')


def need(p, c):
    n = 0
    pd = set(p.dst)
    cs = set(c.src)
    cd = set(c.dst)
    if p.kind == 'valu':
        pv = {r for r in pd if r[0] in 'va'}
        ps = {r for r in pd if r[0] == 's' or r == ('x', 'vcc')}
        if c.kind == 'mfma' and pv & cs:
            n = max(n, 2)
        if c.kind == 'valu':
            if p.istrans and not c.istrans and pv & cs:
                n = max(n, 1)
            if c.dpp and pv & cs:
                n = max(n, 2)
            if c.op.startswith(('v_readlane', 'v_readfirstlane')) and pv & cs:
                n = max(n, 1)
            if c.op.startswith('v_permlane') and pv & cs:
                n = max(n, 2)
            if ps & cs:
                n = max(n, 4 if c.op.startswith(('v_readlane', 'v_writelane')) else 2)
            if p.isdot and pv & (cs | cd):
                if c.op == p.op and not (pv & set(x for o in c.ops[1:3] for x in regs_of(o))):
                    pass
                else:
                    n = max(n, 3)
            if 'sdwa' in p.op and pv & (cs | cd):
                n = max(n, 1)
        if p.isdot and c.kind in ('mfma', 'vmem', 'ds') and pv & cs:
            n = max(n, 3)
        if c.kind == 'vmem' and ps & cs:
            n = max(n, 5)
        if c.kind == 'salu' and ps & cs:
            n = max(n, 1)
        if ('x', 'exec') in pd:
            n = max(n, 5)
    if p.kind == 'mfma':
        P = p.passes
        if c.kind == 'mfma':
            if pd & set(c.srcAB):
                n = max(n, P + 4)
            if pd & set(c.srcC):
                if c.srcC == p.dst and c.passes == P:
                    pass
                else:
                    n = max(n, P + 2)
            elif pd & cd and not (c.dst == p.dst and c.passes == P):
                n = max(n, P + 2)
        elif c.kind in ('valu', 'vmem', 'ds'):
            if pd & (cs | cd):
                n = max(n, P + 4)
            if c.kind == 'valu' and set(p.srcC) & cd:
                n = max(n, P - 1)
    if p.kind == 'vmem' and getattr(p, 'sdata', None) and len(p.sdata) >= 3:
        if set(p.sdata) & cd:
            n = max(n, 2 if c.kind in ('valu', 'mfma') else 1)
    if p.kind == 'salu' and ('x', 'm0') in pd and c.kind == 'vmem' and getattr(c, 'lds_dma', False):
        n = max(n, 1)
    return n


class Asm:
    def __init__(self):
        self.lines = []
        self.nnops = 0

    def raw(self, text):
        self.lines.append(text)

    def label(self, name):
        self.lines.append(name + ':')

    def __call__(self, text):
        for t in text.strip().split('\n'):
            t = t.strip()
            if not t or t.startswith(';'):
                continue
            if t.endswith(':'):
                self.lines.append(t)
                continue
            self.emit(Ins(t))

    def emit(self, ins):
        dist = 0
        req = 0
        for prev in reversed(self.lines):
            if not isinstance(prev, Ins):
                continue
            if prev.op == 's_endpgm':
                break
            r = need(prev, ins) - dist
            if r > req:
                req = r
            dist += prev.states
            if dist > 24:
                break
        while req > 0:
            k = min(req, 16)
            self.lines.append(Ins('s_nop %d' % (k - 1)))
            self.nnops += 1
            req -= k
        self.lines.append(ins)

    def text(self):
        out = []
        for l in self.lines:
            if isinstance(l, Ins):
                out.append('    ' + l.text)
            else:
                out.append(l)
        return '\n'.join(out) + '\n'


def vr(a, n=1):
    return 'v%d' % a if n == 1 else 'v[%d:%d]' % (a, a + n - 1)


def sr(a, n=1):
    return 's%d' % a if n == 1 else 's[%d:%d]' % (a, a + n - 1)
```

```python
import sys, math, struct
import numpy as np
from asmlib import Asm, vr, sr

USE_PK = True
STAMP = False

KC_STRIDE = 33 * 16384
Z1_OFF = 0
Z2_OFF = 0x500000
LN2_OFF = 0xA00000
KEY_OFF = 0xE00000
WMAX_OFF = 0xE04000
SCALE_OFF = 0xE05000
TOP_OFF = 0xE06000
ACT_OFF = 0xE10000
STAMP_OFF = 0xF00000
WS_BYTES = 0x1000000
W_BYTES = 2048 * 1026


def f16(x):
    return int(np.float16(x).view(np.uint16))


def pk16(a, b):
    return f16(a) | (f16(b) << 16)


def f32(x):
    return int(np.float32(x).view(np.uint32))


def cs(num, den):
    num %= den
    a = 2 * math.pi * num / den
    c, s = math.cos(a), math.sin(a)
    if abs(c) < 1e-15: c = 0.0
    if abs(s) < 1e-15: s = 0.0
    return c, s


def table1():
    T = np.zeros((16, 64, 4), dtype=np.uint32)
    for l in range(64):
        q, g = l & 15, l >> 4
        for nu in range(2):
            k1 = 16 * nu + q
            for p in range(4):
                c0, s0 = cs((4 * (2 * p) + g) * k1, 32)
                c1, s1 = cs((4 * (2 * p + 1) + g) * k1, 32)
                T[nu * 2 + 0, l, p] = pk16(c0, c1)
                T[nu * 2 + 1, l, p] = pk16(-s0, -s1)
            for be in range(2):
                for r in range(4):
                    n2 = 2 * (4 * g + r) + be
                    c, s = cs(n2 * k1, 1024)
                    T[4 + (be * 2 + nu) * 2 + 0, l, r] = f32(c)
                    T[4 + (be * 2 + nu) * 2 + 1, l, r] = f32(-s)
        for be in range(2):
            for r in range(4):
                n2 = 2 * (4 * g + r) + be
                c, s = cs(n2 * q, 32)
                T[12 + be * 2 + 0, l, r] = pk16(c, s)
                T[12 + be * 2 + 1, l, r] = pk16(-s, c)
    return T


def table3():
    T = np.zeros((16, 64, 4), dtype=np.uint32)
    for l in range(64):
        q, g = l & 15, l >> 4
        for be in range(2):
            n2 = 2 * q + be
            for i in range(4):
                c, s = cs(n2 * (4 * g + i), 32)
                T[be * 2 + 0, l, i] = pk16(c, -s)
                T[be * 2 + 1, l, i] = pk16(s, c)
            for nu in range(2):
                for r in range(4):
                    k1 = 16 * nu + 4 * g + r
                    c, s = cs(n2 * k1, 1024)
                    T[4 + (nu * 2 + be) * 2 + 0, l, r] = f32(c * 0.25)
                    T[4 + (nu * 2 + be) * 2 + 1, l, r] = f32(s * 0.25)
        for mu in range(2):
            n1 = 16 * mu + 4 * (q & 3) + (q >> 2)
            for nu in range(2):
                for r in range(4):
                    k1 = 16 * nu + 4 * g + r
                    c, s = cs(n1 * k1, 32)
                    T[12 + mu * 2 + nu, l, r] = pk16(c, -s)
    return T


def kernel_begin(a, name):
    a.raw('.text')
    a.raw('.globl %s' % name)
    a.raw('.p2align 8')
    a.raw('.type %s,@function' % name)
    a.label(name)


def kernel_desc(name, vgpr, sgpr):
    acc = (vgpr + 3) // 4 * 4
    return '''.section .rodata,"a"
.p2align 6
.amdhsa_kernel %s
  .amdhsa_next_free_vgpr %d
  .amdhsa_next_free_sgpr %d
  .amdhsa_accum_offset %d
  .amdhsa_group_segment_fixed_size 0
  .amdhsa_kernarg_size 88
  .amdhsa_user_sgpr_count 2
  .amdhsa_user_sgpr_kernarg_segment_ptr 1
  .amdhsa_system_sgpr_workgroup_id_x 1
  .amdhsa_float_denorm_mode_32 3
.end_amdhsa_kernel
''' % (name, vgpr, sgpr, acc)


def srd(a, d, base, nbytes, off=0):
    if off:
        a('s_add_u32 s%d, s%d, 0x%x' % (d, base, off))
        a('s_addc_u32 s%d, s%d, 0' % (d + 1, base + 1))
    else:
        a('s_mov_b32 s%d, s%d' % (d, base))
        a('s_mov_b32 s%d, s%d' % (d + 1, base + 1))
    a('s_mov_b32 s%d, 0x%x' % (d + 2, nbytes))
    a('s_mov_b32 s%d, 0x00020000' % (d + 3))


DPPM = 'row_mask:0xf bank_mask:0xf'


def wave_reduce(a, op, regs, sdst):
    for ctl in ('quad_perm:[1,0,3,2] ' + DPPM, 'quad_perm:[2,3,0,1] ' + DPPM, 'row_half_mirror ' + DPPM,
                'row_mirror ' + DPPM, 'row_bcast:15 row_mask:0xa bank_mask:0xf', 'row_bcast:31 row_mask:0xc bank_mask:0xf'):
        for r in regs:
            a('%s_dpp v%d, v%d, v%d %s' % (op, r, r, r, ctl))
    for r, s in zip(regs, sdst):
        a('v_readlane_b32 s%d, v%d, 63' % (s, r))


def unpack_bf16(a, lo, hi, src):
    a('v_lshlrev_b32 v%d, 16, v%d' % (lo, src))
    a('v_and_b32 v%d, 0xffff0000, v%d' % (hi, src))


def round_bf16(a, dst, src):
    a('v_cvt_pk_bf16_f32 v%d, v%d, v%d' % (dst, src, src))
    a('v_lshlrev_b32 v%d, 16, v%d' % (dst, dst))


def cmul4(a, re, im, c, s, t):
    if USE_PK:
        for h in (0, 2):
            a('v_pk_mul_f32 %s, %s, %s' % (vr(t + h, 2), vr(im + h, 2), vr(s + h, 2)))
        for h in (0, 2):
            a('v_pk_mul_f32 %s, %s, %s' % (vr(im + h, 2), vr(im + h, 2), vr(c + h, 2)))
        for h in (0, 2):
            a('v_pk_fma_f32 %s, %s, %s, %s' % (vr(im + h, 2), vr(re + h, 2), vr(s + h, 2), vr(im + h, 2)))
        for h in (0, 2):
            a('v_pk_fma_f32 %s, %s, %s, %s neg_lo:[0,0,1] neg_hi:[0,0,1]' % (vr(re + h, 2), vr(re + h, 2), vr(c + h, 2), vr(t + h, 2)))
    else:
        for r in range(4):
            a('v_mul_f32 v%d, v%d, v%d' % (t + r, im + r, s + r))
        for r in range(4):
            a('v_mul_f32 v%d, v%d, v%d' % (im + r, im + r, c + r))
        for r in range(4):
            a('v_fmac_f32 v%d, v%d, v%d' % (im + r, re + r, s + r))
        for r in range(4):
            a('v_fma_f32 v%d, v%d, v%d, -v%d' % (re + r, re + r, c + r, t + r))


def slow_map(a, dst, tmp):
    a('s_and_b32 s%d, s2, 0xf0' % dst)
    a('s_and_b32 s%d, s2, 7' % tmp)
    a('s_lshl_b32 s%d, s%d, 1' % (tmp, tmp))
    a('s_or_b32 s%d, s%d, s%d' % (dst, dst, tmp))
    a('s_bfe_u32 s%d, s2, 0x10003' % tmp)
    a('s_or_b32 s%d, s%d, s%d' % (dst, dst, tmp))


def stamp_begin(a):
    if STAMP:
        a('s_memrealtime s[96:97]')


def stamp_end(a, kidx, ws):
    if not STAMP:
        return
    a('s_waitcnt vmcnt(0) lgkmcnt(0)')
    a('s_memrealtime s[98:99]')
    a('s_mov_b64 exec, 1')
    a('s_lshl_b32 s95, s2, 4')
    a('s_add_u32 s95, s95, s94')
    a('s_lshl_b32 s95, s95, 3')
    a('s_add_u32 s95, s95, 0x%x' % (STAMP_OFF + kidx * 0x10000))
    a('s_waitcnt lgkmcnt(0)')
    a('v_mov_b32 v2, s96')
    a('v_mov_b32 v3, s98')
    a('v_mov_b32 v1, s95')
    a('global_store_dwordx2 v1, v[2:3], %s' % sr(ws, 2))


def ln_stats_finish(a, s_sum2, v_dm, v_t, scale):
    a('v_mul_f32 v%d, v%d, v%d' % (v_dm, v_dm, v_dm))
    a('v_mov_b32 v%d, 0x3a800000' % v_t)
    a('v_fma_f32 v%d, s%d, v%d, -v%d' % (v_t, s_sum2, v_t, v_dm))
    a('v_max_f32 v%d, 0, v%d' % (v_t, v_t))
    round_bf16(a, v_t, v_t)
    a('v_add_f32 v%d, 0x%x, v%d' % (v_t, f32(1e-5), v_t))
    round_bf16(a, v_t, v_t)
    a('v_sqrt_f32 v%d, v%d' % (v_t, v_t))
    round_bf16(a, v_t, v_t)
    a('v_rcp_f32 v%d, v%d' % (v_t, v_t))
    if scale != 1.0:
        a('v_mul_f32 v%d, 0x%x, v%d' % (v_t, f32(scale), v_t))


def sum16(a, e, t):
    if USE_PK:
        for i in range(4):
            a('v_pk_add_f32 %s, %s, %s' % (vr(t + 2 * i, 2), vr(e + 4 * i, 2), vr(e + 4 * i + 2, 2)))
        a('v_pk_add_f32 %s, %s, %s' % (vr(t, 2), vr(t, 2), vr(t + 2, 2)))
        a('v_pk_add_f32 %s, %s, %s' % (vr(t + 4, 2), vr(t + 4, 2), vr(t + 6, 2)))
        a('v_pk_add_f32 %s, %s, %s' % (vr(t, 2), vr(t, 2), vr(t + 4, 2)))
        a('v_add_f32 v%d, v%d, v%d' % (t, t, t + 1))
    else:
        for i in range(8):
            a('v_add_f32 v%d, v%d, v%d' % (t + i, e + 2 * i, e + 2 * i + 1))
        for i in range(4):
            a('v_add_f32 v%d, v%d, v%d' % (t + i, t + i, t + i + 4))
        for i in range(2):
            a('v_add_f32 v%d, v%d, v%d' % (t + i, t + i, t + i + 2))
        a('v_add_f32 v%d, v%d, v%d' % (t, t, t + 1))


def sumsq16(a, e, t):
    if USE_PK:
        a('v_pk_mul_f32 %s, %s, %s' % (vr(t, 2), vr(e, 2), vr(e, 2)))
        a('v_pk_mul_f32 %s, %s, %s' % (vr(t + 2, 2), vr(e + 2, 2), vr(e + 2, 2)))
        for i in range(2, 8):
            d = t + 2 * (i & 1)
            a('v_pk_fma_f32 %s, %s, %s, %s' % (vr(d, 2), vr(e + 2 * i, 2), vr(e + 2 * i, 2), vr(d, 2)))
        a('v_pk_add_f32 %s, %s, %s' % (vr(t, 2), vr(t, 2), vr(t + 2, 2)))
        a('v_add_f32 v%d, v%d, v%d' % (t, t, t + 1))
    else:
        for i in range(4):
            a('v_mul_f32 v%d, v%d, v%d' % (t + i, e + i, e + i))
        for i in range(4, 16):
            a('v_fmac_f32 v%d, v%d, v%d' % (t + (i & 3), e + i, e + i))
        a('v_add_f32 v%d, v%d, v%d' % (t, t, t + 1))
        a('v_add_f32 v%d, v%d, v%d' % (t + 2, t + 2, t + 3))
        a('v_add_f32 v%d, v%d, v%d' % (t, t, t + 2))


def bcast_op16(a, op, dst, e, vb, neg=False):
    if USE_PK:
        assert vb % 2 == 0
        for i in range(8):
            m = ' op_sel_hi:[1,0]'
            if neg:
                m += ' neg_lo:[0,1] neg_hi:[0,1]'
            a('v_pk_%s_f32 %s, %s, %s%s' % (op, vr(dst + 2 * i, 2), vr(e + 2 * i, 2), vr(vb, 2), m))
    else:
        for i in range(16):
            o = 'sub' if neg else op
            a('v_%s_f32 v%d, v%d, v%d' % (o, dst + i, e + i, vb))


def table_dma(a, tab, swave, vl16, sa, ldsbase=0):
    a('s_getpc_b64 %s' % sr(sa, 2))
    a('s_add_u32 s%d, s%d, %s@rel32@lo+4' % (sa, sa, tab))
    a('s_addc_u32 s%d, s%d, %s@rel32@hi+12' % (sa + 1, sa + 1, tab))
    a('s_lshl_b32 s3, s%d, 11' % swave)
    a('s_add_u32 s%d, s%d, s3' % (sa, sa))
    a('s_addc_u32 s%d, s%d, 0' % (sa + 1, sa + 1))
    if ldsbase:
        a('s_add_u32 s3, s3, %d' % ldsbase)
    a('s_mov_b32 m0, s3')
    a('global_load_lds_dwordx4 v%d, %s' % (vl16, sr(sa, 2)))
    a('global_load_lds_dwordx4 v%d, %s offset:1024' % (vl16, sr(sa, 2)))


XB = 16384
RS2 = 4224
LDS13 = XB + 4 * RS2 + 64


def radix8_matrix(a, dst, sslow, vq, vg, t, inverse):
    a('v_lshrrev_b32 v%d, 1, v%d' % (t, vq))
    a('v_and_b32 v%d, 1, v%d' % (t + 1, vq))
    a('v_cvt_f32_u32 v%d, v%d' % (t + 1, t + 1))
    a('v_mul_f32 v%d, 0.5, v%d' % (t + 1, t + 1))
    a('v_mul_f32 v%d, 0.5, v%d' % (t + 1, t + 1))
    sgn = -1.0 if inverse else 1.0
    for i in range(2):
        if not inverse:
            a('v_lshlrev_b32 v%d, 9, v%d' % (t + 2, vg))
            a('v_add_u32 v%d, s%d, v%d' % (t + 2, sslow, t + 2))
            if i:
                a('v_add_u32 v%d, 0x100, v%d' % (t + 2, t + 2))
            a('v_mul_u32_u24 v%d, v%d, v%d' % (t + 2, t + 2, t))
        else:
            a('v_lshlrev_b32 v%d, 8, v%d' % (t + 2, t))
            a('v_add_u32 v%d, s%d, v%d' % (t + 2, sslow, t + 2))
            a('v_lshlrev_b32 v%d, 1, v%d' % (t + 3, vg))
            if i:
                a('v_add_u32 v%d, 1, v%d' % (t + 3, t + 3))
            a('v_mul_u32_u24 v%d, v%d, v%d' % (t + 2, t + 2, t + 3))
        a('v_and_b32 v%d, 0x7ff, v%d' % (t + 2, t + 2))
        a('v_cvt_f32_u32 v%d, v%d' % (t + 2, t + 2))
        a('v_fmaak_f32 v%d, v%d, v%d, 0' % (t + 2, t + 2, t + 2)) if False else None
        a('v_mul_f32 v%d, 0x%x, v%d' % (t + 2, f32(sgn / 2048.0), t + 2))
        a('v_add_f32 v%d, v%d, v%d' % (t + 2, t + 2, t + 1))
        a('v_cos_f32 v%d, v%d' % (t + 3, t + 2))
        a('v_sin_f32 v%d, v%d' % (t + 2, t + 2))
        a('v_cvt_pk_f16_f32 v%d, v%d, v%d' % (dst + i, t + 3, t + 2))


def k1(a):
    name = 'k1_kernel'
    kernel_begin(a, name)
    stamp_begin(a)
    a('s_cmp_ge_u32 s2, 256')
    a('s_cbranch_scc1 k1_end')
    a('s_load_dwordx4 s[4:7], s[0:1], 0')
    a('s_load_dwordx2 s[8:9], s[0:1], 16')
    a('s_load_dwordx2 s[10:11], s[0:1], 80')
    VL, VQ, VG, VL4, VL16, VT16 = 1, 2, 3, 4, 5, 6
    a('v_lshrrev_b32 v7, 6, v0')
    a('v_and_b32 v%d, 63, v0' % VL)
    a('v_readfirstlane_b32 s94, v7')
    a('v_lshlrev_b32 v%d, 4, v%d' % (VL16, VL))
    table_dma(a, 'tab1', 94, VL16, 28)
    a('v_lshlrev_b32 v%d, 2, v%d' % (VL4, VL))
    a('v_lshlrev_b32 v%d, 4, v0' % VT16)
    a('v_and_b32 v%d, 15, v%d' % (VQ, VL))
    a('v_lshrrev_b32 v%d, 4, v%d' % (VG, VL))
    slow_map(a, 30, 31)
    a('s_lshl_b32 s31, s94, 8')
    a('s_add_u32 s31, s31, s30')
    a('s_lshl_b32 s31, s31, 11')
    a('s_lshl_b32 s32, s2, 13')
    a('s_add_u32 s33, s32, 0x200000')
    a('s_waitcnt lgkmcnt(0)')
    srd(a, 12, 4, 2048 * 2048)
    R = 8
    for j in range(8):
        a('buffer_load_dword v%d, v%d, s[12:15], s31 offen offset:%d' % (R + j, VL4, 256 * j))
    srd(a, 16, 6, W_BYTES)
    srd(a, 20, 8, W_BYTES)
    WREG = 128
    a('buffer_load_dwordx4 %s, v%d, s[16:19], s32 offen' % (vr(WREG, 4), VT16))
    a('buffer_load_dwordx4 %s, v%d, s[20:23], s32 offen' % (vr(WREG + 4, 4), VT16))
    a('buffer_load_dwordx4 %s, v%d, s[16:19], s33 offen' % (vr(WREG + 8, 4), VT16))
    a('buffer_load_dwordx4 %s, v%d, s[20:23], s33 offen' % (vr(WREG + 12, 4), VT16))
    srd(a, 24, 10, WS_BYTES)
    M8 = 144
    radix8_matrix(a, M8, 30, VQ, VG, 32, False)
    NP, NM = 148, 152
    for i in range(4):
        a('v_mov_b32 v%d, 0x%x' % (NP + i, pk16(0.5, 0)))
        a('v_mov_b32 v%d, 0x%x' % (NM + i, pk16(-0.5, 0)))
    F0 = 146
    a('v_cmp_eq_u32 vcc, 0, v%d' % VL)
    a('v_mov_b32 v%d, 1.0' % F0)
    a('v_cndmask_b32 v%d, v%d, v%d, vcc' % (F0, F0, F0)) if False else None
    a('v_mov_b32 v32, 0.5')
    a('v_cndmask_b32 v%d, v%d, v32, vcc' % (F0, F0))
    WA = 147
    a('s_lshr_b32 s34, s94, 1')
    a('s_mul_i32 s34, s34, %d' % RS2)
    a('s_and_b32 s35, s94, 1')
    a('s_lshl_b32 s35, s35, 2')
    a('s_add_u32 s34, s34, s35')
    a('s_add_u32 s34, s34, %d' % XB)
    a('v_lshlrev_b32 v%d, 10, v%d' % (WA, VG))
    a('v_lshl_add_u32 v%d, v%d, 3, v%d' % (WA, VQ, WA))
    a('v_add_u32 v%d, s34, v%d' % (WA, WA))
    WN = 156
    a('v_lshlrev_b32 v%d, 3, v%d' % (WN, VQ))
    a('v_add_u32 v%d, s34, v%d' % (WN, WN))
    RA = 157
    a('v_mul_u32_u24 v%d, %d, v%d' % (RA, RS2, VG))
    a('v_lshl_add_u32 v%d, v%d, 3, v%d' % (RA, VQ, RA))
    RN = 158
    a('v_mov_b32 v%d, v%d' % (RN, RA))
    a('s_lshl_b32 s35, s94, 9')
    a('v_add_u32 v%d, s35, v%d' % (RA, RA))
    SV = 159
    a('s_mov_b32 s35, %d' % (2 * KC_STRIDE))
    a('v_mul_lo_u32 v%d, v%d, s35' % (SV, VG))
    a('v_lshl_add_u32 v%d, v%d, 2, v%d' % (SV, VQ, SV))
    a('s_waitcnt vmcnt(12)')
    a('s_barrier')
    TB = 64
    for ch in range(16):
        a('ds_read_b128 %s, v%d offset:%d' % (vr(TB + 4 * ch, 4), VL16, 1024 * ch))
    E, T = 16, 32
    a('s_waitcnt vmcnt(4)')
    for j in range(8):
        unpack_bf16(a, E + j, E + 8 + j, R + j)
    sum16(a, E, T)
    wave_reduce(a, 'v_add_f32', [T], [36])
    MB_, DM, RC = 40, 41, 42
    a('v_mov_b32 v%d, 0x3a800000' % DM)
    a('v_mul_f32 v%d, s36, v%d' % (DM, DM))
    round_bf16(a, MB_, DM)
    a('v_sub_f32 v%d, v%d, v%d' % (DM, DM, MB_))
    bcast_op16(a, 'add', E, E, MB_, neg=True)
    sumsq16(a, E, T)
    wave_reduce(a, 'v_add_f32', [T], [37])
    for p in range(8):
        a('v_cvt_pk_bf16_f32 v%d, v%d, v%d' % (R + p, E + 2 * p, E + 2 * p + 1))
    for p in range(8):
        unpack_bf16(a, E + 2 * p, E + 2 * p + 1, R + p)
    ln_stats_finish(a, 37, DM, RC, 1.0 / 32)
    bcast_op16(a, 'mul', E, E, RC)
    for p in range(8):
        a('v_cvt_pk_bf16_f32 v%d, v%d, v%d' % (R + p, E + 2 * p, E + 2 * p + 1))
    for p in range(8):
        unpack_bf16(a, E + 2 * p, E + 2 * p + 1, R + p)
    for p in range(8):
        a('v_cvt_pk_f16_f32 v%d, v%d, v%d' % (R + p, E + 2 * p, E + 2 * p + 1))
    a('s_waitcnt lgkmcnt(0)')
    D1 = 32
    d1 = lambda be, nu, ri: D1 + ((be * 2 + nu) * 2 + ri) * 4
    for be in range(2):
        for nu in range(2):
            for ri in range(2):
                a('v_mfma_f32_16x16x32_f16 %s, %s, %s, 0' % (vr(d1(be, nu, ri), 4), vr(R + 4 * be, 4), vr(TB + (nu * 2 + ri) * 4, 4)))
    B2 = 16
    b2 = lambda nu, be: B2 + (nu * 2 + be) * 4
    for be in range(2):
        for nu in range(2):
            tw = TB + 16 + (be * 2 + nu) * 8
            cmul4(a, d1(be, nu, 0), d1(be, nu, 1), tw, tw + 4, 160)
            for r in range(4):
                a('v_cvt_pk_f16_f32 v%d, v%d, v%d' % (b2(nu, be) + r, d1(be, nu, 0) + r, d1(be, nu, 1) + r))
    D2 = 32
    d2 = lambda nu, ro: D2 + (nu * 2 + ro) * 4
    DN = 48
    for be in range(2):
        for nu in range(2):
            for ro in range(2):
                c = '0' if be == 0 else vr(d2(nu, ro), 4)
                a('v_mfma_f32_16x16x32_f16 %s, %s, %s, %s' % (vr(d2(nu, ro), 4), vr(TB + 48 + (be * 2 + ro) * 4, 4), vr(b2(nu, be), 4), c))
        a('v_mfma_f32_16x16x32_f16 %s, %s, %s, %s' % (vr(DN, 4), vr(NP if be == 0 else NM, 4), vr(b2(0, be), 4), '0' if be == 0 else vr(DN, 4)))
    a('s_waitcnt vmcnt(0)')
    for i in range(16):
        a('v_and_b32 v%d, 0x7fff7fff, v%d' % (WREG + i, WREG + i))
    for st in (8, 4, 2, 1):
        for i in range(st):
            a('v_pk_max_u16 v%d, v%d, v%d' % (WREG + i, WREG + i, WREG + i + st))
    a('v_lshlrev_b32 v%d, 16, v%d' % (WREG + 1, WREG))
    a('v_max_u32 v%d, v%d, v%d' % (WREG, WREG, WREG + 1))
    a('v_mul_f32 v%d, v%d, v%d' % (d2(0, 0), d2(0, 0), F0))
    P = 52
    for r in range(4):
        for nu in range(2):
            a('v_cvt_pk_f16_f32 v%d, v%d, v%d' % (P + 2 * r + nu, d2(nu, 0) + r, d2(nu, 1) + r))
    a('v_cvt_pk_f16_f32 v%d, v%d, 0' % (P + 8, DN))
    for r in range(4):
        a('ds_write2_b32 v%d, v%d, v%d offset0:%d offset1:%d' % (WA, P + 2 * r, P + 2 * r + 1, 64 * r, 64 * r + 32))
    a('ds_write_b32 v%d, v%d offset:4096' % (WN, P + 8))
    wave_reduce(a, 'v_max_u32', [WREG], [38])
    a('v_mov_b32 v%d, s38' % WREG)
    a('s_lshl_b32 s35, s94, 2')
    a('v_mov_b32 v%d, s35' % (WREG + 1))
    a('ds_write_b32 v%d, v%d offset:%d' % (WREG + 1, WREG, XB + 4 * RS2))
    a('s_waitcnt lgkmcnt(0)')
    a('s_barrier')
    Q = 16
    for jj in range(4):
        a('ds_read_b64 %s, v%d offset:%d' % (vr(Q + 2 * jj, 2), RA, XB + 128 * jj))
    a('s_lshl_b32 s40, s94, 16')
    a('s_lshl_b32 s41, s30, 6')
    a('s_add_u32 s40, s40, s41')
    a('s_cmp_lg_u32 s94, 0')
    a('s_cbranch_scc1 k1_nonyq')
    a('ds_read_b64 %s, v%d offset:%d' % (vr(Q + 8, 2), RN, XB + 4096))
    a('v_mov_b32 v60, 0')
    a('ds_read_b128 %s, v60 offset:%d' % (vr(WREG, 4), XB + 4 * RS2))
    a('ds_read_b128 %s, v60 offset:%d' % (vr(WREG + 4, 4), XB + 4 * RS2 + 16))
    a('s_waitcnt lgkmcnt(0)')
    a('v_mfma_f32_16x16x16_f16 %s, %s, %s, 0' % (vr(48, 4), vr(M8, 2), vr(Q + 8, 2)))
    a('v_max3_u32 v%d, v%d, v%d, v%d' % (WREG, WREG, WREG + 1, WREG + 2))
    a('v_max3_u32 v%d, v%d, v%d, v%d' % (WREG + 3, WREG + 3, WREG + 4, WREG + 5))
    a('v_max3_u32 v%d, v%d, v%d, v%d' % (WREG, WREG, WREG + 6, WREG + 7))
    a('v_max_u32 v%d, v%d, v%d' % (WREG, WREG, WREG + 3))
    a('s_lshl_b32 s42, s2, 2')
    a('s_add_u32 s42, s42, 0x%x' % WMAX_OFF)
    a('buffer_store_dword v%d, v60, s[24:27], s42 offen' % WREG)
    a('s_add_u32 s42, s41, %d' % (32 * 16384))
    a('s_add_u32 s43, s42, %d' % KC_STRIDE)
    a('v_cvt_pk_f16_f32 v48, v48, v49')
    a('v_cvt_pk_f16_f32 v50, v50, v51')
    a('buffer_store_dword v48, v%d, s[24:27], s42 offen' % SV)
    a('buffer_store_dword v50, v%d, s[24:27], s43 offen' % SV)
    a.label('k1_nonyq')
    a('s_waitcnt lgkmcnt(0)')
    for jj in range(4):
        a('v_mfma_f32_16x16x16_f16 %s, %s, %s, 0' % (vr(32 + 4 * jj, 4), vr(M8, 2), vr(Q + 2 * jj, 2)))
    for jj in range(4):
        d = 32 + 4 * jj
        a('v_cvt_pk_f16_f32 v%d, v%d, v%d' % (d, d, d + 1))
        a('v_cvt_pk_f16_f32 v%d, v%d, v%d' % (d + 2, d + 2, d + 3))
        a('s_add_u32 s43, s40, %d' % KC_STRIDE)
        a('buffer_store_dword v%d, v%d, s[24:27], s40 offen' % (d, SV))
        a('buffer_store_dword v%d, v%d, s[24:27], s43 offen' % (d + 2, SV))
        if jj < 3:
            a('s_add_u32 s40, s40, 16384')
    stamp_end(a, 0, 10)
    a.label('k1_end')
    a('s_endpgm')
    return name, 164, 102, (256, 512, LDS13)


def k2(a):
    name = 'k2_kernel'
    kernel_begin(a, name)
    stamp_begin(a)
    a('s_cmp_ge_u32 s2, 264')
    a('s_cbranch_scc1 k2_end')
    a('s_load_dwordx4 s[4:7], s[0:1], 8')
    a('s_load_dwordx2 s[10:11], s[0:1], 80')
    VL, VQ, VG = 1, 2, 3
    a('v_lshrrev_b32 v7, 6, v0')
    a('v_and_b32 v%d, 63, v0' % VL)
    a('v_readfirstlane_b32 s94, v7')
    a('v_and_b32 v%d, 15, v%d' % (VQ, VL))
    a('v_lshrrev_b32 v%d, 4, v%d' % (VG, VL))
    DV = 4
    a('v_lshlrev_b32 v%d, 12, v%d' % (DV, VG))
    a('v_lshl_add_u32 v%d, v%d, 2, v%d' % (DV, VQ, DV))
    a('s_and_b32 s30, s2, 7')
    a('s_lshr_b32 s31, s2, 3')
    a('s_mul_i32 s32, s30, 33')
    a('s_add_u32 s32, s32, s31')
    a('s_lshl_b32 s32, s32, 14')
    a('s_lshl_b32 s33, s94, 7')
    a('s_add_u32 s32, s32, s33')
    WV = 5
    a('s_mov_b32 s33, %d' % (512 * 1026))
    a('v_mul_lo_u32 v%d, v%d, s33' % (WV, VG))
    a('v_lshl_add_u32 v%d, v%d, 1, v%d' % (WV, VQ, WV))
    a('s_lshl_b32 s33, s94, 4')
    a('s_add_u32 s33, s33, s30')
    a('s_mul_i32 s33, s33, 1026')
    a('s_lshl_b32 s34, s31, 5')
    a('s_add_u32 s33, s33, s34')
    VL16 = 6
    a('v_lshlrev_b32 v%d, 4, v%d' % (VL16, VL))
    WR, WI = 32, 40
    for i in range(16):
        a('v_mov_b32 v%d, 0' % (WR + i))
    a('s_waitcnt lgkmcnt(0)')
    srd(a, 24, 10, WS_BYTES)
    X = 8
    for be in range(2):
        for i in range(4):
            a('buffer_load_dword v%d, v%d, s[24:27], s32 offen offset:%d' % (X + 4 * be + i, DV, 1024 * i + 64 * be))
    WM = 48
    a('s_mov_b32 s35, 0x%x' % WMAX_OFF)
    a('buffer_load_dwordx4 %s, v%d, s[24:27], s35 offen' % (vr(WM, 4), VL16))
    srd(a, 16, 4, W_BYTES)
    srd(a, 20, 6, W_BYTES)
    for be in range(2):
        for r in range(4):
            a('s_add_u32 s34, s33, %d' % (be * 8 * 1026 + r * 128 * 1026))
            a('buffer_load_short_d16_hi v%d, v%d, s[16:19], s34 offen' % (WR + 4 * be + r, WV))
            a('buffer_load_short_d16_hi v%d, v%d, s[20:23], s34 offen' % (WI + 4 * be + r, WV))
    F, G, H = 56, 64, 80
    t = 16
    a('v_cvt_f32_u32 v%d, v%d' % (t, VQ))
    a('v_cvt_f32_u32 v%d, v%d' % (t + 1, VG))
    a('v_cvt_f32_u32 v%d, v7' % (t + 2))

    def block(dst, ang, step, inverse):
        for i in range(4):
            a('v_cos_f32 v%d, v%d' % (t + 6, ang))
            a('v_sin_f32 v%d, v%d' % (t + 7, ang))
            if i < 3:
                a('v_add_f32 v%d, v%d, v%d' % (ang, ang, step))
            if not inverse:
                a('v_cvt_pk_f16_f32 v%d, v%d, v%d' % (dst + i, t + 6, t + 7))
                a('v_cvt_pk_f16_f32 v%d, -v%d, v%d' % (dst + 4 + i, t + 7, t + 6))
            else:
                a('v_cvt_pk_f16_f32 v%d, v%d, -v%d' % (dst + i, t + 6, t + 7))
                a('v_cvt_pk_f16_f32 v%d, v%d, v%d' % (dst + 4 + i, t + 7, t + 6))
    a('v_mul_f32 v%d, 0x%x, v%d' % (t + 4, f32(1 / 16), t))
    a('v_mul_f32 v%d, 4.0, v%d' % (t + 3, t + 1))
    a('v_mul_f32 v%d, v%d, v%d' % (t + 5, t + 3, t + 4))
    block(F, t + 5, t + 4, False)
    for be in range(2):
        a('v_mul_f32 v%d, 0x%x, v%d' % (t + 8, f32(2 / 256), t + 2))
        if be:
            a('v_add_f32 v%d, 0x%x, v%d' % (t + 8, f32(1 / 256), t + 8))
        a('v_add_f32 v%d, v%d, v%d' % (t + 9, t + 8, t + 4))
        a('v_mul_f32 v%d, v%d, v%d' % (t + 5, t + 3, t + 9))
        block(G + 8 * be, t + 5, t + 9, False)
        a('v_fma_f32 v%d, v%d, v%d, 0' % (t + 5, t + 3, t + 4))
        a('v_fmac_f32 v%d, v%d, v%d' % (t + 5, t, t + 8))
        block(H + 8 * be, t + 5, t + 4, True)
    WA, RA = 96, 97
    a('s_lshr_b32 s36, s94, 1')
    a('s_lshl_b32 s36, s36, 8')
    a('s_and_b32 s37, s94, 1')
    a('s_lshl_b32 s37, s37, 3')
    a('s_add_u32 s36, s36, s37')
    a('v_lshlrev_b32 v%d, 12, v%d' % (WA, VG))
    a('v_lshl_add_u32 v%d, v%d, 4, v%d' % (WA, VQ, WA))
    a('v_add_u32 v%d, s36, v%d' % (WA, WA))
    a('s_lshl_b32 s36, s94, 11')
    a('v_add_u32 v%d, s36, v%d' % (RA, VL16))
    D = 16
    dd = lambda be, ro: D + (be * 2 + ro) * 4
    a('s_waitcnt vmcnt(17)')
    for be in range(2):
        for ro in range(2):
            a('v_mfma_f32_16x16x32_f16 %s, %s, %s, 0' % (vr(dd(be, ro), 4), vr(F + 4 * ro, 4), vr(X + 4 * be, 4)))
    P = 100
    for r in range(4):
        for be in range(2):
            a('v_cvt_pk_f16_f32 v%d, v%d, v%d' % (P + 2 * r + be, dd(be, 0) + r, dd(be, 1) + r))
    for r in range(4):
        a('ds_write_b64 v%d, %s offset:%d' % (WA, vr(P + 2 * r, 2), 1024 * r))
    a('s_waitcnt vmcnt(16)')
    a('v_max3_u32 v%d, v%d, v%d, v%d' % (WM, WM, WM + 1, WM + 2))
    a('v_max_u32 v%d, v%d, v%d' % (WM, WM, WM + 3))
    a('s_waitcnt lgkmcnt(0)')
    a('s_barrier')
    for be in range(2):
        a('ds_read_b128 %s, v%d offset:%d' % (vr(X + 4 * be, 4), RA, 1024 * be))
    wave_reduce(a, 'v_max_u32', [WM], [38])
    a('s_lshr_b32 s38, s38, 23')
    a('s_max_u32 s38, s38, 16')
    a('s_min_u32 s38, s38, 240')
    a('s_sub_u32 s39, 246, s38')
    a('s_lshl_b32 s39, s39, 23')
    a('s_sub_u32 s40, s38, 5')
    a('s_lshl_b32 s40, s40, 23')
    a('s_waitcnt lgkmcnt(0)')
    for be in range(2):
        for ro in range(2):
            a('v_mfma_f32_16x16x32_f16 %s, %s, %s, 0' % (vr(dd(be, ro), 4), vr(G + 8 * be + 4 * ro, 4), vr(X + 4 * be, 4)))
    a('s_waitcnt vmcnt(0)')
    for i in range(16):
        a('v_mul_f32 v%d, s39, v%d' % (WR + i, WR + i))
    for be in range(2):
        cmul4(a, dd(be, 0), dd(be, 1), WR + 4 * be, WI + 4 * be, 108)
        for r in range(4):
            a('v_cvt_pk_f16_f32 v%d, v%d, v%d' % (X + 4 * be + r, dd(be, 0) + r, dd(be, 1) + r))
    for be in range(2):
        for ro in range(2):
            a('v_mfma_f32_16x16x32_f16 %s, %s, %s, 0' % (vr(dd(be, ro), 4), vr(H + 8 * be + 4 * ro, 4), vr(X + 4 * be, 4)))
    for r in range(4):
        for be in range(2):
            a('v_cvt_pk_f16_f32 v%d, v%d, v%d' % (P + 2 * r + be, dd(be, 1) + r, dd(be, 0) + r))
    for r in range(4):
        a('ds_write_b64 v%d, %s offset:%d' % (WA, vr(P + 2 * r, 2), 16384 + 1024 * r))
    a('s_add_u32 s32, s32, 0x%x' % Z2_OFF)
    a('s_waitcnt lgkmcnt(0)')
    a('s_barrier')
    for be in range(2):
        a('ds_read_b128 %s, v%d offset:%d' % (vr(X + 4 * be, 4), RA, 16384 + 1024 * be))
    a('s_or_b32 s41, s2, s94')
    a('s_cmp_lg_u32 s41, 0')
    a('s_cbranch_scc1 k2_nos')
    a('v_mov_b32 v%d, s40' % WM)
    a('v_mov_b32 v%d, 0' % (WM + 1))
    a('s_mov_b32 s41, 0x%x' % SCALE_OFF)
    a('buffer_store_dword v%d, v%d, s[24:27], s41 offen' % (WM, WM + 1))
    a.label('k2_nos')
    a('s_waitcnt lgkmcnt(0)')
    for be in range(2):
        for ro in range(2):
            a('v_mfma_f32_16x16x32_f16 %s, %s, %s, 0' % (vr(dd(be, ro), 4), vr(F + 4 * (1 - ro), 4), vr(X + 4 * be, 4)))
    for be in range(2):
        for r in range(4):
            a('v_cvt_pk_f16_f32 v%d, v%d, v%d' % (P + 4 * be + r, dd(be, 0) + r, dd(be, 1) + r))
            a('buffer_store_dword v%d, v%d, s[24:27], s32 offen offset:%d' % (P + 4 * be + r, DV, 1024 * r + 64 * be))
    stamp_end(a, 1, 10)
    a.label('k2_end')
    a('s_endpgm')
    return name, 112, 102, (264, 512, 32768)


def k3(a):
    name = 'k3_kernel'
    kernel_begin(a, name)
    stamp_begin(a)
    a('s_cmp_ge_u32 s2, 256')
    a('s_cbranch_scc1 k3_end')
    a('s_load_dwordx2 s[4:5], s[0:1], 0')
    a('s_load_dwordx2 s[6:7], s[0:1], 32')
    a('s_load_dwordx2 s[8:9], s[0:1], 64')
    a('s_load_dwordx2 s[10:11], s[0:1], 80')
    VL, VQ, VG, VL4, VL16 = 1, 2, 3, 4, 5
    a('v_lshrrev_b32 v7, 6, v0')
    a('v_and_b32 v%d, 63, v0' % VL)
    a('v_readfirstlane_b32 s94, v7')
    a('v_lshlrev_b32 v%d, 4, v%d' % (VL16, VL))
    table_dma(a, 'tab3', 94, VL16, 28)
    a('v_lshlrev_b32 v%d, 2, v%d' % (VL4, VL))
    a('v_and_b32 v%d, 15, v%d' % (VQ, VL))
    a('v_lshrrev_b32 v%d, 4, v%d' % (VG, VL))
    slow_map(a, 30, 31)
    a('s_lshl_b32 s45, s94, 8')
    a('s_add_u32 s45, s45, s30')
    a('s_lshl_b32 s31, s45, 11')
    SV = 6
    a('s_mov_b32 s35, %d' % (2 * KC_STRIDE))
    a('v_mul_lo_u32 v%d, v%d, s35' % (SV, VG))
    a('v_lshl_add_u32 v%d, v%d, 2, v%d' % (SV, VQ, SV))
    a('s_lshl_b32 s40, s94, 16')
    a('s_lshl_b32 s41, s30, 6')
    a('s_add_u32 s41, s41, 0x%x' % Z2_OFF)
    a('s_add_u32 s40, s40, s41')
    a('s_waitcnt lgkmcnt(0)')
    srd(a, 24, 10, WS_BYTES)
    a('s_load_dword s44, s[10:11], 0x%x' % 0) if False else None
    Q = 16
    for jj in range(4):
        a('s_add_u32 s43, s40, %d' % KC_STRIDE)
        a('buffer_load_dword v%d, v%d, s[24:27], s40 offen' % (Q + 2 * jj, SV))
        a('buffer_load_dword v%d, v%d, s[24:27], s43 offen' % (Q + 2 * jj + 1, SV))
        if jj < 3:
            a('s_add_u32 s40, s40, 16384')
    a('s_add_u32 s42, s41, %d' % (32 * 16384))
    a('s_add_u32 s43, s42, %d' % KC_STRIDE)
    a('buffer_load_dword v%d, v%d, s[24:27], s42 offen' % (Q + 8, SV))
    a('buffer_load_dword v%d, v%d, s[24:27], s43 offen' % (Q + 9, SV))
    a('s_add_u32 s46, s10, 0x%x' % SCALE_OFF)
    a('s_addc_u32 s47, s11, 0')
    a('s_load_dword s44, s[46:47], 0')
    srd(a, 12, 4, 2048 * 2048)
    XR = 128
    for j in range(8):
        a('buffer_load_dword v%d, v%d, s[12:15], s31 offen offset:%d' % (XR + j, VL4, 256 * j))
    srd(a, 16, 6, 2048)
    RW = 136
    for j in range(8):
        a('buffer_load_dword v%d, v%d, s[16:19], 0 offen offset:%d' % (RW + j, VL4, 256 * j))
    srd(a, 20, 8, 2048 * 2048)
    M8 = 144
    radix8_matrix(a, M8, 30, VQ, VG, 32, True)
    WA = 146
    a('v_mul_u32_u24 v%d, %d, v%d' % (WA, RS2, VG))
    a('v_lshl_add_u32 v%d, v%d, 3, v%d' % (WA, VQ, WA))
    a('s_lshl_b32 s35, s94, 9')
    a('v_add_u32 v%d, s35, v%d' % (WA, WA))
    RA = 147
    a('s_lshr_b32 s34, s94, 1')
    a('s_mul_i32 s34, s34, %d' % RS2)
    a('s_and_b32 s35, s94, 1')
    a('s_lshl_b32 s35, s35, 2')
    a('s_add_u32 s34, s34, s35')
    a('s_add_u32 s34, s34, %d' % XB)
    a('v_lshlrev_b32 v%d, 10, v%d' % (RA, VG))
    a('v_lshl_add_u32 v%d, v%d, 3, v%d' % (RA, VQ, RA))
    a('v_add_u32 v%d, s34, v%d' % (RA, RA))
    a('s_lshr_b32 s48, s94, 1')
    a('s_lshl_b32 s48, s48, 4')
    a('s_waitcnt vmcnt(16)')
    for jj in range(5):
        a('v_mfma_f32_16x16x16_f16 %s, %s, %s, 0' % (vr(32 + 4 * jj, 4), vr(M8, 2), vr(Q + 2 * jj, 2)))
    for jj in range(4):
        d = 32 + 4 * jj
        a('v_cvt_pk_f16_f32 v%d, v%d, v%d' % (d, d, d + 1))
        a('v_cvt_pk_f16_f32 v%d, v%d, v%d' % (d + 1, d + 2, d + 3))
        a('ds_write_b64 v%d, %s offset:%d' % (WA, vr(d, 2), XB + 128 * jj))
    a('v_readlane_b32 s49, v48, s48')
    a('v_readlane_b32 s50, v50, s48')
    a('s_bitcmp1_b32 s94, 0')
    a('s_cselect_b32 s49, s50, s49')
    a('s_waitcnt lgkmcnt(0)')
    a('s_barrier')
    A1 = 8
    for nu in range(2):
        a('ds_read2_b32 %s, v%d offset0:%d offset1:%d' % (vr(A1 + 4 * nu, 2), RA, 32 * nu, 32 * nu + 64))
        a('ds_read2_b32 %s, v%d offset0:%d offset1:%d' % (vr(A1 + 4 * nu + 2, 2), RA, 32 * nu + 128, 32 * nu + 192))
    TB = 64
    for ch in range(16):
        a('ds_read_b128 %s, v%d offset:%d' % (vr(TB + 4 * ch, 4), VL16, 1024 * ch))
    CP, CM = 148, 152
    a('v_mov_b32 v%d, 0x3e800000' % CP)
    a('v_mul_f32 v%d, s49, v%d' % (CP, CP))
    for i in range(1, 4):
        a('v_mov_b32 v%d, v%d' % (CP + i, CP))
    for i in range(4):
        a('v_sub_f32 v%d, 0, v%d' % (CM + i, CP))
    a('s_waitcnt lgkmcnt(12)')
    DA = 32
    da = lambda nu, be, ri: DA + ((nu * 2 + be) * 2 + ri) * 4
    for nu in range(2):
        for be in range(2):
            for ri in range(2):
                a('v_mfma_f32_16x16x32_f16 %s, %s, %s, 0' % (vr(da(nu, be, ri), 4), vr(A1 + 4 * nu, 4), vr(TB + (be * 2 + ri) * 4, 4)))
    a('s_waitcnt lgkmcnt(0)')
    AB = 16
    ab = lambda be, nu: AB + (be * 2 + nu) * 4
    for nu in range(2):
        for be in range(2):
            tw = TB + 16 + (nu * 2 + be) * 8
            cmul4(a, da(nu, be, 0), da(nu, be, 1), tw, tw + 4, 160)
            for r in range(4):
                a('v_cvt_pk_f16_f32 v%d, v%d, v%d' % (ab(be, nu) + r, da(nu, be, 0) + r, da(nu, be, 1) + r))
    Y = 32
    for nu in range(2):
        for be in range(2):
            for mu in range(2):
                d = Y + 8 * be + 4 * mu
                c = vr(CP if be == 0 else CM, 4) if nu == 0 else vr(d, 4)
                a('v_mfma_f32_16x16x32_f16 %s, %s, %s, %s' % (vr(d, 4), vr(TB + 48 + (mu * 2 + nu) * 4, 4), vr(ab(be, nu), 4), c))
    XE = 64
    a('s_waitcnt vmcnt(8)')
    for j in range(8):
        unpack_bf16(a, XE + j, XE + 8 + j, XR + j)
    PK = 8
    for j in range(8):
        a('v_cvt_pk_bf16_f32 v%d, v%d, v%d' % (PK + j, Y + j, Y + 8 + j))
    for j in range(8):
        unpack_bf16(a, Y + j, Y + 8 + j, PK + j)
    SC = 48
    a('v_mov_b32 v%d, s44' % SC)
    if USE_PK:
        for i in range(8):
            a('v_pk_fma_f32 %s, %s, %s, %s op_sel_hi:[1,0,1]' % (vr(Y + 2 * i, 2), vr(Y + 2 * i, 2), vr(SC, 2), vr(XE + 2 * i, 2)))
    else:
        for i in range(16):
            a('v_fma_f32 v%d, v%d, v%d, v%d' % (Y + i, Y + i, SC, XE + i))
    for j in range(8):
        a('v_cvt_pk_bf16_f32 v%d, v%d, v%d' % (PK + j, Y + j, Y + 8 + j))
    Hh = 64
    for j in range(8):
        unpack_bf16(a, Hh + j, Hh + 8 + j, PK + j)
    T = 80
    sum16(a, Hh, T)
    wave_reduce(a, 'v_add_f32', [T], [36])
    MB_, DM, RC = 50, 51, 52
    a('v_mov_b32 v%d, 0x3a800000' % DM)
    a('v_mul_f32 v%d, s36, v%d' % (DM, DM))
    round_bf16(a, MB_, DM)
    a('v_sub_f32 v%d, v%d, v%d' % (DM, DM, MB_))
    E = 32
    bcast_op16(a, 'add', E, Hh, MB_, neg=True)
    sumsq16(a, E, T)
    wave_reduce(a, 'v_add_f32', [T], [37])
    for j in range(8):
        a('v_cvt_pk_bf16_f32 v%d, v%d, v%d' % (PK + j, E + j, E + 8 + j))
    for j in range(8):
        unpack_bf16(a, E + j, E + 8 + j, PK + j)
    ln_stats_finish(a, 37, DM, RC, 1.0)
    bcast_op16(a, 'mul', E, E, RC)
    a('s_add_u32 s33, s31, 0x%x' % LN2_OFF)
    for j in range(8):
        a('v_cvt_pk_bf16_f32 v%d, v%d, v%d' % (PK + j, E + j, E + 8 + j))
    a('s_waitcnt vmcnt(0)')
    for j in range(8):
        a('buffer_store_dword v%d, v%d, s[24:27], s33 offen offset:%d' % (PK + j, VL4, 256 * j))
    for j in range(8):
        unpack_bf16(a, E + j, E + 8 + j, PK + j)
    if USE_PK:
        for i in range(8):
            a('v_pk_add_f32 %s, %s, %s' % (vr(Hh + 2 * i, 2), vr(Hh + 2 * i, 2), vr(E + 2 * i, 2)))
    else:
        for i in range(16):
            a('v_add_f32 v%d, v%d, v%d' % (Hh + i, Hh + i, E + i))
    OUT = 16
    for j in range(8):
        a('v_cvt_pk_bf16_f32 v%d, v%d, v%d' % (OUT + j, Hh + j, Hh + 8 + j))
        a('buffer_store_dword v%d, v%d, s[20:23], s31 offen offset:%d' % (OUT + j, VL4, 256 * j))
    a('v_dot2_f32_bf16 v%d, v%d, v%d, 0' % (T, PK, RW))
    a('v_dot2_f32_bf16 v%d, v%d, v%d, 0' % (T + 1, PK + 1, RW + 1))
    for j in range(2, 8):
        a('v_dot2_f32_bf16 v%d, v%d, v%d, v%d' % (T + (j & 1), PK + j, RW + j, T + (j & 1)))
    a('v_add_f32 v%d, v%d, v%d' % (T, T, T + 1))
    wave_reduce(a, 'v_add_f32', [T], [38])
    a('s_ashr_i32 s39, s38, 31')
    a('s_or_b32 s39, s39, 0x80000000')
    a('s_xor_b32 s38, s38, s39')
    a('s_and_b32 s38, s38, 0xfffff800')
    a('s_sub_u32 s39, 2047, s45')
    a('s_or_b32 s38, s38, s39')
    a('s_lshl_b32 s39, s45, 2')
    a('s_add_u32 s39, s39, 0x%x' % KEY_OFF)
    a('v_mov_b32 v%d, s38' % T)
    a('v_mov_b32 v%d, 0' % (T + 1))
    a('s_mov_b64 exec, 1')
    a('buffer_store_dword v%d, v%d, s[24:27], s39 offen' % (T, T + 1))
    stamp_end(a, 2, 10)
    a.label('k3_end')
    a('s_endpgm')
    return name, 164, 102, (256, 512, LDS13)


def top8_rounds(a, regs, tmp, lab, sres, body):
    a('s_mov_b32 s60, 0')
    a.label(lab)
    if len(regs) == 4:
        a('v_max3_u32 v%d, v%d, v%d, v%d' % (tmp, regs[0], regs[1], regs[2]))
        a('v_max_u32 v%d, v%d, v%d' % (tmp, tmp, regs[3]))
    else:
        a('v_mov_b32 v%d, v%d' % (tmp, regs[0]))
    wave_reduce(a, 'v_max_u32', [tmp], [sres])
    for r in regs:
        a('v_cmp_ne_u32 vcc, s%d, v%d' % (sres, r))
        a('v_cndmask_b32 v%d, 0, v%d, vcc' % (r, r))
    body(a)
    a('s_add_u32 s60, s60, 1')
    a('s_cmp_lt_u32 s60, 8')
    a('s_cbranch_scc1 %s' % lab)


def k4(a):
    name = 'k4_kernel'
    NWG = 224
    kernel_begin(a, name)
    stamp_begin(a)
    a('s_cmp_ge_u32 s2, %d' % NWG)
    a('s_cbranch_scc1 k4_end')
    a('s_load_dwordx4 s[4:7], s[0:1], 40')
    a('s_load_dwordx2 s[10:11], s[0:1], 80')
    VL, VQ, VG = 1, 2, 3
    a('v_lshrrev_b32 v7, 6, v0')
    a('v_and_b32 v%d, 63, v0' % VL)
    a('v_readfirstlane_b32 s94, v7')
    a('v_and_b32 v%d, 15, v%d' % (VQ, VL))
    a('v_lshrrev_b32 v%d, 4, v%d' % (VG, VL))
    a('s_and_b32 s30, s2, 7')
    a('s_mul_i32 s30, s30, 28')
    a('s_lshr_b32 s31, s2, 3')
    a('s_add_u32 s30, s30, s31')
    DV = 4
    a('v_lshrrev_b32 v%d, 1, v%d' % (DV, VL))
    a('v_mul_u32_u24 v%d, 7168, v%d' % (DV, DV))
    a('v_and_b32 v5, 1, v%d' % VL)
    a('v_lshl_add_u32 v%d, v5, 4, v%d' % (DV, DV))
    a('s_mul_i32 s32, s94, %d' % (128 * 7168))
    a('s_lshl_b32 s33, s30, 5')
    a('s_add_u32 s32, s32, s33')
    a('v_lshlrev_b32 v6, 4, v0')
    a('s_lshl_b32 s34, s94, 13')
    a('s_add_u32 s34, s34, 9216')
    a('s_waitcnt lgkmcnt(0)')
    srd(a, 24, 10, WS_BYTES)
    KEY = 8
    a('s_mov_b32 s35, 0x%x' % KEY_OFF)
    a('buffer_load_dwordx4 %s, v6, s[24:27], s35 offen' % vr(KEY, 4))
    srd(a, 16, 4, 1024 * 7168)
    srd(a, 20, 6, 1024 * 7168)
    for i in range(4):
        a('s_add_u32 m0, s34, %d' % (1024 * i))
        a('buffer_load_dwordx4 v%d, s[16:19], s32 offen lds' % DV)
        a('s_add_u32 m0, s34, %d' % (4096 + 1024 * i))
        a('buffer_load_dwordx4 v%d, s[20:23], s32 offen lds' % DV)
        if i < 3:
            a('s_add_u32 s32, s32, %d' % (32 * 7168))
    SBASE = 0
    RES = 13
    a('v_mov_b32 v%d, 0' % RES)
    a('s_waitcnt vmcnt(8)')

    def body1(a):
        a('v_writelane_b32 v%d, s61, m0' % RES) if False else None
        a('s_lshl_b64 s[62:63], 1, s60')
        a('s_mov_b64 exec, s[62:63]')
        a('v_mov_b32 v%d, s61' % RES)
        a('s_mov_b64 exec, -1')
    top8_rounds(a, [KEY, KEY + 1, KEY + 2, KEY + 3], 12, 'k4_l1', 61, body1)
    a('s_lshl_b32 s36, s94, 5')
    a('v_lshlrev_b32 v14, 2, v%d' % VL)
    a('v_add_u32 v15, s36, v14')
    a('s_mov_b64 exec, 0xff')
    a('ds_write_b32 v15, v%d offset:%d' % (RES, SBASE))
    a('s_mov_b64 exec, -1')
    a('s_waitcnt lgkmcnt(0)')
    a('s_barrier')
    a('ds_read_b32 v%d, v14 offset:%d' % (KEY, SBASE))
    a('s_mov_b32 s64, 0x01010101')
    a('s_mov_b32 s65, 0x01010101')
    a('s_waitcnt lgkmcnt(0)')

    def body2(a):
        a('s_lshl_b64 s[62:63], s[64:65], s60')
        a('s_mov_b64 exec, s[62:63]')
        a('v_mov_b32 v%d, s61' % RES)
        a('s_mov_b64 exec, -1')
    top8_rounds(a, [KEY], 12, 'k4_l2', 61, body2)
    a('v_and_b32 v14, 0x7ff, v%d' % RES)
    a('v_sub_u32 v14, 0x7ff, v14')
    a('v_lshlrev_b32 v14, 11, v14')
    a('v_lshl_add_u32 v14, v%d, 4, v14' % VG)
    a('s_lshl_b32 s36, s94, 8')
    a('s_add_u32 s36, s36, 0x%x' % LN2_OFF)
    XA = 16
    for i in range(4):
        a('buffer_load_dwordx4 %s, v14, s[24:27], s36 offen offset:%d' % (vr(XA + 4 * i, 4), 64 * i))
    a('s_or_b32 s41, s2, s94')
    a('s_cmp_lg_u32 s41, 0')
    a('s_cbranch_scc1 k4_nos')
    a('v_lshlrev_b32 v15, 2, v%d' % VL)
    a('s_mov_b32 s41, 0x%x' % TOP_OFF)
    a('buffer_store_dword v%d, v15, s[24:27], s41 offen' % RES)
    a('s_waitcnt vmcnt(0)')
    a.label('k4_nos')
    TA = 15
    a('v_lshlrev_b32 v%d, 8, v%d' % (TA, VG))
    a('v_lshl_add_u32 v%d, v%d, 3, v%d' % (TA, VQ, TA))
    a('v_add_u32 v%d, s34, v%d' % (TA, TA))
    a('s_waitcnt vmcnt(4)')
    WB = 32
    for m in range(2):
        for i in range(4):
            for h in range(2):
                a('ds_read_b64_tr_b16 %s, v%d offset:%d' % (vr(WB + (m * 4 + i) * 4 + 2 * h, 2), TA, 4096 * m + 1024 * i + 128 * h))
    a('s_waitcnt vmcnt(0) lgkmcnt(0)')
    ACC = 64
    for i in range(4):
        for m in range(2):
            c = '0' if i == 0 else vr(ACC + 4 * m, 4)
            a('v_mfma_f32_16x16x32_bf16 %s, %s, %s, %s' % (vr(ACC + 4 * m, 4), vr(XA + 4 * i, 4), vr(WB + (m * 4 + i) * 4, 4), c))
    a('v_cmp_gt_u32 vcc, 32, v%d' % VL)
    for r in range(4):
        a('v_cndmask_b32 v%d, v%d, v%d, vcc' % (ACC + r, ACC + 4 + r, ACC + r))
    RED = SBASE + 1024
    a('s_lshl_b32 s36, s94, 10')
    a('v_lshlrev_b32 v14, 4, v%d' % VL)
    a('v_add_u32 v15, s36, v14')
    a('ds_write_b128 v15, %s offset:%d' % (vr(ACC, 4), RED - 4096)) if False else None
    a('v_add_u32 v15, %d, v15' % RED)
    a('ds_write_b128 v15, %s' % vr(ACC, 4))
    a('s_waitcnt lgkmcnt(0)')
    a('s_barrier')
    a('s_cmp_lg_u32 s94, 0')
    a('s_cbranch_scc1 k4_fin')
    a('v_add_u32 v14, %d, v14' % RED)
    for w in range(8):
        a('ds_read_b128 %s, v14 offset:%d' % (vr(32 + 4 * w, 4), 1024 * w))
    a('s_waitcnt lgkmcnt(0)')
    for st in (16, 8, 4):
        for i in range(st):
            a('v_add_f32 v%d, v%d, v%d' % (32 + i, 32 + i, 32 + i + st))
    for r in range(4):
        a('v_mov_b32 v%d, v%d' % (36 + r, 32 + r))
    for r in range(4):
        a('v_permlane32_swap_b32 v%d, v%d' % (32 + r, 36 + r))
    for r in range(4):
        round_bf16(a, 32 + r, 32 + r)
        round_bf16(a, 36 + r, 36 + r)
    for r in range(4):
        a('v_mul_f32 v%d, 0x%x, v%d' % (40 + r, f32(-math.log2(math.e)), 32 + r))
        a('v_exp_f32 v%d, v%d' % (40 + r, 40 + r))
        a('v_add_f32 v%d, 1.0, v%d' % (40 + r, 40 + r))
        a('v_rcp_f32 v%d, v%d' % (40 + r, 40 + r))
        a('v_mul_f32 v%d, v%d, v%d' % (32 + r, 32 + r, 40 + r))
        round_bf16(a, 32 + r, 32 + r)
        a('v_mul_f32 v%d, v%d, v%d' % (32 + r, 32 + r, 36 + r))
        a('v_cvt_pk_bf16_f32 v%d, v%d, v%d' % (32 + r, 32 + r, 32 + r))
    a('v_mul_u32_u24 v14, %d, v%d' % (4 * 7168, VG))
    a('v_lshl_add_u32 v14, v%d, 1, v14' % VQ)
    a('s_add_u32 s33, s33, 0x%x' % ACT_OFF)
    a('s_mov_b32 exec_hi, 0')
    for r in range(4):
        a('buffer_store_short v%d, v14, s[24:27], s33 offen' % (32 + r))
        if r < 3:
            a('s_add_u32 s33, s33, 7168')
    a.label('k4_fin')
    stamp_end(a, 3, 10)
    a.label('k4_end')
    a('s_endpgm')
    return name, 72, 102, (NWG, 512, 65536 + 1024 + 8192)


def k5(a):
    name = 'k5_kernel'
    NWG = 64
    kernel_begin(a, name)
    stamp_begin(a)
    a('s_cmp_ge_u32 s2, %d' % NWG)
    a('s_cbranch_scc1 k5_end')
    a('s_load_dwordx4 s[4:7], s[0:1], 56')
    a('s_load_dwordx2 s[10:11], s[0:1], 80')
    VL, VQ, VG = 1, 2, 3
    a('v_lshrrev_b32 v7, 6, v0')
    a('v_and_b32 v%d, 63, v0' % VL)
    a('v_readfirstlane_b32 s94, v7')
    a('v_and_b32 v%d, 15, v%d' % (VQ, VL))
    a('v_lshrrev_b32 v%d, 4, v%d' % (VG, VL))
    a('s_and_b32 s30, s2, 7')
    a('s_lshl_b32 s30, s30, 3')
    a('s_lshr_b32 s31, s2, 3')
    a('s_add_u32 s30, s30, s31')
    DV = 4
    a('v_lshrrev_b32 v%d, 1, v%d' % (DV, VL))
    a('v_lshlrev_b32 v%d, 11, v%d' % (DV, DV))
    a('v_and_b32 v5, 1, v%d' % VL)
    a('v_lshl_add_u32 v%d, v5, 4, v%d' % (DV, DV))
    a('s_mul_i32 s32, s94, %d' % (224 * 2048))
    a('s_lshl_b32 s33, s30, 5')
    a('s_add_u32 s32, s32, s33')
    a('s_mul_i32 s34, s94, 7168')
    a('v_and_b32 v6, 7, v%d' % VL)
    a('v_mul_u32_u24 v6, 7168, v6')
    a('v_lshl_add_u32 v6, v%d, 4, v6' % VG)
    a('s_mul_i32 s36, s94, 448')
    a('s_add_u32 s36, s36, 0x%x' % ACT_OFF)
    a('s_waitcnt lgkmcnt(0)')
    srd(a, 16, 4, 3584 * 2048)
    for i in range(7):
        a('s_add_u32 m0, s34, %d' % (1024 * i))
        a('buffer_load_dwordx4 v%d, s[16:19], s32 offen lds' % DV)
        if i < 6:
            a('s_add_u32 s32, s32, %d' % (32 * 2048))
    srd(a, 24, 10, WS_BYTES)
    XA = 16
    for i in range(7):
        a('buffer_load_dwordx4 %s, v6, s[24:27], s36 offen offset:%d' % (vr(XA + 4 * i, 4), 64 * i))
    srd(a, 20, 6, 2048 * 2048)
    KY = 80
    a('v_lshlrev_b32 v8, 4, v%d' % VG)
    a('v_and_b32 v8, 16, v8')
    a('s_mov_b32 s41, 0x%x' % TOP_OFF)
    a('buffer_load_dwordx4 %s, v8, s[24:27], s41 offen' % vr(KY, 4))
    TA = 15
    a('v_lshlrev_b32 v%d, 8, v%d' % (TA, VG))
    a('v_lshl_add_u32 v%d, v%d, 3, v%d' % (TA, VQ, TA))
    a('v_add_u32 v%d, s34, v%d' % (TA, TA))
    a('s_waitcnt vmcnt(0)')
    OA, OV = 84, 88
    for r in range(4):
        a('v_and_b32 v%d, 0x7ff, v%d' % (OA + r, KY + r))
        a('v_sub_u32 v%d, 0x7ff, v%d' % (OA + r, OA + r))
        a('v_lshlrev_b32 v%d, 11, v%d' % (OA + r, OA + r))
        a('v_lshl_add_u32 v%d, v%d, 1, v%d' % (OA + r, VQ, OA + r))
        a('buffer_load_ushort v%d, v%d, s[20:23], s33 offen' % (OV + r, OA + r))
    WB = 48
    for i in range(7):
        for h in range(2):
            a('ds_read_b64_tr_b16 %s, v%d offset:%d' % (vr(WB + i * 4 + 2 * h, 2), TA, 1024 * i + 128 * h))
    a('s_waitcnt lgkmcnt(0)')
    ACC = 76
    for i in range(7):
        c = '0' if i == 0 else vr(ACC, 4)
        a('v_mfma_f32_16x16x32_bf16 %s, %s, %s, %s' % (vr(ACC, 4), vr(XA + 4 * i, 4), vr(WB + i * 4, 4), c))
    RED = 16 * 7168
    a('s_lshl_b32 s36, s94, 9')
    a('s_add_u32 s36, s36, %d' % RED)
    a('v_lshlrev_b32 v14, 4, v%d' % VL)
    a('v_add_u32 v15, s36, v14')
    a('s_mov_b32 exec_hi, 0')
    a('ds_write_b128 v15, %s' % vr(ACC, 4))
    a('s_mov_b64 exec, -1')
    a('s_waitcnt lgkmcnt(0)')
    a('s_barrier')
    a('s_cmp_lg_u32 s94, 0')
    a('s_cbranch_scc1 k5_fin')
    a('v_add_u32 v14, %d, v14' % RED)
    for w in range(8):
        a('ds_read_b128 %s, v14 offset:%d' % (vr(16 + 4 * w, 4), 1024 * w))
    for r in range(4):
        k = KY + r
        a('v_ashrrev_i32 v8, 31, v%d' % k)
        a('v_not_b32 v8, v8')
        a('v_or_b32 v8, 0x80000000, v8')
        a('v_or_b32 v%d, 0x7ff, v%d' % (k, k))
        a('v_xor_b32 v%d, 0x400, v%d' % (k, k))
        a('v_xor_b32 v%d, v%d, v8' % (k, k))
        round_bf16(a, k, k)
        a('v_mul_f32 v%d, 0x%x, v%d' % (k, f32(-math.log2(math.e)), k))
        a('v_exp_f32 v%d, v%d' % (k, k))
        a('v_add_f32 v%d, 1.0, v%d' % (k, k))
        a('v_rcp_f32 v%d, v%d' % (k, k))
        round_bf16(a, k, k)
    a('s_waitcnt lgkmcnt(0)')
    for st in (16, 8, 4):
        for i in range(st):
            a('v_add_f32 v%d, v%d, v%d' % (16 + i, 16 + i, 16 + i + st))
    for r in range(4):
        a('v_mov_b32 v%d, v%d' % (20 + r, 16 + r))
    for r in range(4):
        a('v_permlane32_swap_b32 v%d, v%d' % (16 + r, 20 + r))
    a('s_waitcnt vmcnt(0)')
    for r in range(4):
        d = 16 + r
        a('v_add_f32 v%d, v%d, v%d' % (d, d, 20 + r))
        round_bf16(a, d, d)
        a('v_mul_f32 v%d, v%d, v%d' % (d, d, KY + r))
        round_bf16(a, d, d)
        a('v_lshlrev_b32 v%d, 16, v%d' % (OV + r, OV + r))
        a('v_add_f32 v%d, v%d, v%d' % (d, d, OV + r))
        a('v_cvt_pk_bf16_f32 v%d, v%d, v%d' % (d, d, d))
    a('s_mov_b32 exec_hi, 0')
    for r in range(4):
        a('buffer_store_short v%d, v%d, s[20:23], s33 offen' % (16 + r, OA + r))
    a.label('k5_fin')
    stamp_end(a, 4, 10)
    a.label('k5_end')
    a('s_endpgm')
    return name, 92, 102, (NWG, 1024, 16 * 7168 + 8192)


def emit_table(name, T):
    out = ['.p2align 8', '.type %s,@object' % name, '%s:' % name]
    flat = T.reshape(-1)
    for i in range(0, len(flat), 8):
        out.append('.long ' + ','.join('0x%x' % int(v) for v in flat[i:i + 8]))
    out.append('.size %s, %d' % (name, len(flat) * 4))
    return '\n'.join(out) + '\n'


def main():
    global USE_PK, STAMP
    args = sys.argv[1:]
    if '--stamp' in args:
        STAMP = True
    if '--nopk' in args:
        USE_PK = False
    outp = [x for x in args if not x.startswith('--')][0]
    a = Asm()
    ks = [k(a) for k in (k1, k2, k3, k4, k5)]
    head = '; GFNet spectral block + MoD router/FFN, 5-launch pipeline (generated by work/gen/gen.py)\n'
    for name, v, s, (g, b, l) in ks:
        head += '; @launch kernel=%s grid=(%d,1,1) block=(%d,1,1) lds=%d\n' % (name, g, b, l)
    head += '.amdgcn_target "amdgcn-amd-amdhsa--gfx950"\n'
    body = a.text()
    desc = ''.join(kernel_desc(name, v, s) for name, v, s, _ in ks)
    tabs = '.section .rodata,"a"\n' + emit_table('tab1', table1()) + emit_table('tab3', table3())
    open(outp, 'w').write(head + body + desc + tabs)
    print('wrote', outp, 'nops', a.nnops)


main()
```
